```python
import torch

def _softmax(x, axis=-1):
    return torch.softmax(x, dim=axis)
def _gelu(x):
    return torch.nn.functional.gelu(x, approximate="tanh")
def _silu(x):
    return torch.nn.functional.silu(x)
def _sigmoid(x):
    return torch.sigmoid(x)
def _layernorm(x, axis=-1, eps=1e-5):
    m = x.mean(dim=axis, keepdim=True)
    v = x.var(dim=axis, keepdim=True, unbiased=False)
    return (x - m) / torch.sqrt(v + eps)
def _scatter_add(tgt, idx, src, axis=0):
    return tgt.clone().index_add_(axis, idx, src)
def _segment_sum(src, seg, n):
    out = torch.zeros((n,) + src.shape[1:], dtype=src.dtype)
    return out.index_add_(0, seg, src)
def _pad(x, pw):
    flat = tuple(v for pair in reversed(pw) for v in pair)
    return torch.nn.functional.pad(x, flat)

kernel_name = 'sequential_preLN__linear_kernel_hedgehog__dense_activation_gelu__prompt'

def setup_inputs():

    _w = (lambda a: (lambda t: t.to(torch.bfloat16) if t.is_floating_point() else t)(torch.as_tensor(a)))
    def _A_setup():
        B, S, D, H = 1, 2048, 576, 32
        Dh = D // H
        return {
            "x": _w((lambda *s: torch.randn(*s, dtype=torch.bfloat16) * 0.05)(B, S, D)),
            "wqkv": _w((lambda *s: torch.randn(*s, dtype=torch.bfloat16) * 0.2)(D, 3 * D)),
            "w_phi": _w((lambda *s: torch.randn(*s, dtype=torch.bfloat16) * 0.2)(H, Dh, Dh) * (Dh ** -0.5)),
            "wo": _w((lambda *s: torch.randn(*s, dtype=torch.bfloat16) * 0.05)(D, D)),
        }
    _A_in = _A_setup()

    def _B_setup():
        B, S, D, F = 1, 2048, 576, 4608
        return {
            "x": _w((lambda *s: torch.randn(*s, dtype=torch.bfloat16) * 0.05)(B, S, D)),
            "w1": _w((lambda *s: torch.randn(*s, dtype=torch.bfloat16) * 3.2)(D, F) * (D ** -0.5)),
            "b1": _w((lambda *s: torch.randn(*s, dtype=torch.bfloat16) * 0.1)(F) * 0.01),
            "w2": _w((lambda *s: torch.randn(*s, dtype=torch.bfloat16) * 0.1)(F, D) * (F ** -0.5)),
            "b2": _w((lambda *s: torch.randn(*s, dtype=torch.bfloat16) * 0.1)(D) * 0.01),
        }
    _B_in = _B_setup()

    return {
        "A_x": _A_in["x"],
        "A_wqkv": _A_in["wqkv"],
        "A_w_phi": _A_in["w_phi"],
        "A_wo": _A_in["wo"],
        "B_x": _B_in["x"],
        "B_w1": _B_in["w1"],
        "B_b1": _B_in["b1"],
        "B_w2": _B_in["w2"],
        "B_b2": _B_in["b2"],
    }

def reference(A_x, A_wqkv, A_w_phi, A_wo, B_x, B_w1, B_b1, B_w2, B_b2):
    def _A_ref(x, wqkv, w_phi, wo):
        B, S, D = x.shape
        H = 32; Dh = D // H
        qkv = (lambda x, *d: x.permute(*d))((x @ wqkv).reshape(B, S, 3, H, Dh), 2, 0, 3, 1, 4)
        q, k, v = qkv[0], qkv[1], qkv[2]
        pq = torch.einsum("bhsd,hdf->bhsf", q, w_phi)
        pk = torch.einsum("bhsd,hdf->bhsf", k, w_phi)
        phi_q = torch.concatenate([_softmax(pq, axis=-1), _softmax(-pq, axis=-1)], axis=-1)
        phi_k = torch.concatenate([_softmax(pk, axis=-1), _softmax(-pk, axis=-1)], axis=-1)
        kv = torch.einsum("bhsf,bhsd->bhfd", phi_k, v)
        z  = torch.einsum("bhsf->bhf", phi_k)
        num = torch.einsum("bhqf,bhfd->bhqd", phi_q, kv)
        den = torch.einsum("bhqf,bhf->bhq", phi_q, z)[..., None] + 1e-6
        o = num / den
        return (lambda x, *d: x.permute(*d))(o, 0, 2, 1, 3).reshape(B, S, D) @ wo

    def _B_ref(x, w1, b1, w2, b2):
        h = torch.einsum("bsd,df->bsf", x, w1) + b1
        h = _gelu(h)
        return torch.einsum("bsf,fd->bsd", h, w2) + b2

    x = A_x
    h = x + _A_ref(_layernorm(x, axis=-1), A_wqkv, A_w_phi, A_wo)
    h2 = h + _B_ref(_layernorm(h, axis=-1), B_w1, B_b1, B_w2, B_b2)
    return h2
```

```python
import sys
sys.path.insert(0, "tools")
from asmlib import *

class WS: pass
_off = 0
def _alloc(n):
    global _off
    o = _off; _off += n
    assert n % 1024 == 0
    return o
WS_BASE = 0
WS.X1F = _alloc(64 * 36 * 1024);   WS.X1F_SZ = 64 * 36 * 1024
WS.WQF = _alloc(32 * 72 * 1024);   WS.WQF_SZ = 32 * 72 * 1024
WS.PHIF = _alloc(32 * 6 * 1024);   WS.PHIF_SZ = 32 * 6 * 1024
WS.WOF = _alloc(36 * 18 * 1024);   WS.WOF_SZ = 36 * 18 * 1024
WS.W1F = _alloc(288 * 19 * 1024);  WS.W1F_SZ = 288 * 19 * 1024
WS.W2F = _alloc(288 * 18 * 1024);  WS.W2F_SZ = 288 * 18 * 1024
WS.KVP = _alloc(32 * 8 * 6144);    WS.KVP_SZ = 32 * 8 * 6144
WS.OF = _alloc(128 * 18 * 1024);   WS.OF_SZ = 128 * 18 * 1024
WS.HF = _alloc(128 * 18 * 1024);   WS.HF_SZ = 128 * 18 * 1024
WS.ST = _alloc(2048 * 32);         WS.ST_SZ = 2048 * 32
WS.PART = _alloc(8 * 32 * 36 * 2 * 1024); WS.PART_SZ = 8 * 32 * 36 * 2 * 1024
WS.END = _off

KA = dict(x=0, wqkv=8, wphi=16, wo=24, bx=32, w1=40, b1=48, w2=56, b2=64, out=72, dbg=80, ws=88)

def srd(A, sd, sp, off, size):
    if off:
        A.e("s_add_u32 s%d, s%d, 0x%x" % (sd, sp, off))
        A.e("s_addc_u32 s%d, s%d, 0" % (sd + 1, sp + 1))
    else:
        A.e("s_mov_b32 s%d, s%d" % (sd, sp))
        A.e("s_mov_b32 s%d, s%d" % (sd + 1, sp + 1))
    A.e("s_mov_b32 s%d, 0x%x" % (sd + 2, size))
    A.e("s_mov_b32 s%d, 0x00020000" % (sd + 3))

def allreduce_x16_x32(A, vr, vt, op="v_add_f32"):
    A.e("v_mov_b32 v%d, v%d" % (vt, vr))
    A.e("s_nop 1")
    A.e("v_permlane16_swap_b32 v%d, v%d" % (vr, vt))
    A.e("%s v%d, v%d, v%d" % (op, vr, vr, vt))
    A.e("v_mov_b32 v%d, v%d" % (vt, vr))
    A.e("s_nop 1")
    A.e("v_permlane32_swap_b32 v%d, v%d" % (vr, vt))
    A.e("%s v%d, v%d, v%d" % (op, vr, vr, vt))

def f2u(x):
    import struct
    return struct.unpack("<I", struct.pack("<f", x))[0]

import os
STAMP = int(os.environ.get("STAMP", "0"))
STAMP_OFF = 0x08000000
class Stamper:
    def __init__(self, A, kidx, sws):
        self.A, self.kidx, self.n, self.sws = A, kidx, 0, sws
    def stamp(self, real=False):
        if not STAMP: return
        assert self.n < 14
        self.A.e("%s s[%d:%d]" % ("s_memrealtime" if real else "s_memtime", 64 + 2 * self.n, 65 + 2 * self.n))
        self.n += 1
    def flush(self, swave, vtmp=250):
        if not STAMP: return
        A = self.A; e = A.e
        e("s_mov_b64 exec, -1")
        e("s_waitcnt vmcnt(0) lgkmcnt(0)")
        srd(A, 92, self.sws, STAMP_OFF + self.kidx * 0x40000, 0x40000)
        e("s_lshl_b32 s96, s2, 4"); e("s_add_u32 s96, s96, s%d" % swave); e("s_lshl_b32 s96, s96, 6")
        e("v_mov_b32 v%d, 0" % vtmp)
        e("s_mov_b64 exec, 1")
        for i in range(self.n):
            e("v_mov_b32 v%d, s%d" % (vtmp + 1, 64 + 2 * i))
            e("buffer_store_dword v%d, v%d, s[92:95], s96 offen offset:%d" % (vtmp + 1, vtmp, 4 * i))
            e("s_nop 1")
        e("s_waitcnt vmcnt(0)")
```

```python
from common import *

K0_NA, K0_NB, K0_NC, K0_NG, K0_ND, K0_NE, K0_NF, K0_NH = 64, 128, 32, 72, 144, 144, 18, 24
K0_GRID = K0_NA + K0_NB + K0_NC + K0_NG + K0_ND + K0_NE + K0_NF + K0_NH
K0_LDS = 36864

def gen_k0(A, name="k0_kernel"):
    kernel_header(A, name)
    e = A.e
    L = lambda s_: name + "_" + s_
    e("s_cmp_ge_u32 s2, %d" % K0_GRID)
    e("s_cbranch_scc1 %s" % L("done"))
    e("s_load_dwordx8 s[8:15], s[0:1], 0")
    e("s_load_dwordx4 s[16:19], s[0:1], 40")
    e("s_load_dwordx2 s[20:21], s[0:1], 56")
    e("s_load_dwordx2 s[22:23], s[0:1], 88")
    e("v_lshrrev_b32 v2, 6, v0")
    e("v_and_b32 v1, 63, v0")
    e("v_readfirstlane_b32 s36, v2")
    e("s_waitcnt lgkmcnt(0)")
    b = 0
    e("s_cmp_lt_u32 s2, %d" % (K0_NA)); e("s_cbranch_scc1 %s" % L("A"))
    b = K0_NA
    e("s_cmp_lt_u32 s2, %d" % (b + K0_NB)); e("s_cbranch_scc1 %s" % L("B")); bB = b; b += K0_NB
    e("s_cmp_lt_u32 s2, %d" % (b + K0_NC)); e("s_cbranch_scc1 %s" % L("C")); bC = b; b += K0_NC
    e("s_cmp_lt_u32 s2, %d" % (b + K0_NG)); e("s_cbranch_scc1 %s" % L("G")); bG = b; b += K0_NG
    e("s_cmp_lt_u32 s2, %d" % (b + K0_ND)); e("s_cbranch_scc1 %s" % L("D")); bD = b; b += K0_ND
    e("s_cmp_lt_u32 s2, %d" % (b + K0_NE)); e("s_cbranch_scc1 %s" % L("E")); bE = b; b += K0_NE
    e("s_cmp_lt_u32 s2, %d" % (b + K0_NF)); e("s_cbranch_scc1 %s" % L("F")); bF = b; b += K0_NF
    bH = b
    e("s_branch %s" % L("H"))

    A.label(L("A"))
    srd(A, 24, 8, 0, 2048 * 1152)
    srd(A, 28, 22, WS.X1F, WS.X1F_SZ)
    e("v_and_b32 v2, 7, v1")
    e("v_lshrrev_b32 v3, 3, v1")
    e("s_lshl_b32 s37, s2, 5")
    e("s_lshl_b32 s38, s36, 3")
    e("s_add_u32 s37, s37, s38")
    e("v_add_u32 v4, s37, v2")
    e("v_mul_u32_u24 v4, 1152, v4")
    e("v_lshl_add_u32 v4, v3, 4, v4")
    for i in range(9):
        e("buffer_load_dwordx4 v[%d:%d], v4, s[24:27], 0 offen offset:%d" % (8 + 4 * i, 11 + 4 * i, i * 128))
    e("v_add_u32 v5, s38, v2")
    e("v_lshlrev_b32 v5, 4, v5")
    e("v_lshl_add_u32 v5, v3, 9, v5")
    e("v_mov_b32 v45, 0x3f803f80")
    for k in range(4): e("v_mov_b32 v%d, 0" % (46 + k))
    e("s_waitcnt vmcnt(0)")
    for n in range(36):
        e("v_dot2_f32_bf16 v%d, v%d, v45, v%d" % (46 + (n & 3), 8 + n, 46 + (n & 3)))
    e("s_nop 1")
    e("v_add_f32 v46, v46, v47"); e("v_add_f32 v48, v48, v49"); e("v_add_f32 v46, v46, v48")
    def red(vr):
        e("s_nop 1")
        e("v_add_f32_dpp v%d, v%d, v%d row_ror:8 row_mask:0xf bank_mask:0xf" % (vr, vr, vr))
        allreduce_x16_x32(A, vr, 50)
    red(46)
    e("v_mul_f32 v46, 0x%x, v46" % f2u(1.0 / 576))
    e("v_mov_b32 v51, 0xffff0000")
    for k in range(4): e("v_mov_b32 v%d, 0" % (52 + k))
    for n in range(36):
        e("v_lshlrev_b32 v%d, 16, v%d" % (64 + 2 * n, 8 + n))
        e("v_and_b32 v%d, v51, v%d" % (65 + 2 * n, 8 + n))
        e("v_sub_f32 v%d, v%d, v46" % (64 + 2 * n, 64 + 2 * n))
        e("v_sub_f32 v%d, v%d, v46" % (65 + 2 * n, 65 + 2 * n))
        e("v_fmac_f32 v%d, v%d, v%d" % (52 + (2 * n & 3), 64 + 2 * n, 64 + 2 * n))
        e("v_fmac_f32 v%d, v%d, v%d" % (52 + ((2 * n + 1) & 3), 65 + 2 * n, 65 + 2 * n))
    e("v_add_f32 v52, v52, v53"); e("v_add_f32 v54, v54, v55"); e("v_add_f32 v52, v52, v54")
    red(52)
    e("v_mov_b32 v53, 0x%x" % f2u(1e-5))
    e("v_fmac_f32 v53, 0x%x, v52" % f2u(1.0 / 576))
    e("v_rsq_f32 v53, v53")
    e("s_nop 0")
    for n in range(36):
        e("v_mul_f32 v%d, v53, v%d" % (64 + 2 * n, 64 + 2 * n))
        e("v_mul_f32 v%d, v53, v%d" % (65 + 2 * n, 65 + 2 * n))
        e("v_cvt_pk_bf16_f32 v%d, v%d, v%d" % (8 + n, 64 + 2 * n, 65 + 2 * n))
    e("s_mul_i32 s37, s2, 36864")
    for i in range(9):
        e("buffer_store_dwordx4 v[%d:%d], v5, s[28:31], s37 offen" % (8 + 4 * i, 11 + 4 * i))
        if i < 8: e("s_add_u32 s37, s37, 4096")
    e("s_endpgm")

    A.label(L("B"))
    srd(A, 24, 10, 0, 576 * 3456)
    srd(A, 28, 22, WS.WQF, WS.WQF_SZ)
    e("s_sub_u32 s37, s2, %d" % bB)
    e("s_lshr_b32 s38, s37, 2")
    e("s_and_b32 s39, s37, 3")
    e("v_and_b32 v2, 31, v1")
    e("v_lshrrev_b32 v3, 5, v1")
    e("v_mul_u32_u24 v4, 57, v2"); e("v_lshrrev_b32 v4, 9, v4")
    e("v_mul_u32_u24 v5, 9, v4"); e("v_sub_u32 v5, v2, v5")
    e("v_mul_u32_u24 v4, 1152, v4")
    e("v_lshl_add_u32 v4, v5, 2, v4")
    e("v_mul_u32_u24 v5, 3456, v3")
    e("v_add_u32 v4, v4, v5")
    e("v_mov_b32 v5, 0x40000000")
    e("v_cmp_gt_u32 vcc, 27, v2")
    e("s_nop 1")
    e("v_cndmask_b32 v4, v5, v4, vcc")
    e("s_mul_i32 s40, s39, %d" % (144 * 3456))
    e("s_mul_i32 s41, s38, 36")
    e("s_add_u32 s40, s40, s41")
    e("s_mul_i32 s41, s36, %d" % (2 * 3456))
    e("s_add_u32 s40, s40, s41")
    e("s_lshl_b32 s42, s36, 8")
    for m in range(18):
        e("s_mov_b32 m0, s42")
        e("s_add_u32 s42, s42, 1024")
        e("buffer_load_dword v4, s[24:27], s40 offen lds")
        e("s_add_u32 s40, s40, %d" % (8 * 3456))
    e("v_lshrrev_b32 v6, 5, v1")
    e("v_lshlrev_b32 v6, 10, v6")
    e("v_bfe_u32 v7, v1, 2, 2")
    e("v_lshl_add_u32 v6, v7, 7, v6")
    e("v_bfe_u32 v7, v1, 4, 1")
    e("v_lshl_add_u32 v6, v7, 5, v6")
    e("v_and_b32 v7, 3, v1")
    e("v_lshl_add_u32 v6, v7, 3, v6")
    e("s_and_b32 s43, s36, 1")
    e("s_lshr_b32 s44, s36, 1")
    e("s_lshl_b32 s45, s43, 6")
    e("s_lshl_b32 s46, s44, 11")
    e("s_add_u32 s45, s45, s46")
    e("v_add_u32 v6, s45, v6")
    e("s_mul_i32 s45, s38, 72")
    e("s_mul_i32 s46, s39, 18")
    e("s_add_u32 s45, s45, s46")
    e("s_lshl_b32 s46, s44, 1")
    e("s_add_u32 s45, s45, s46")
    e("s_add_u32 s45, s45, s43")
    e("s_lshl_b32 s45, s45, 10")
    e("v_lshlrev_b32 v7, 4, v1")
    e("s_waitcnt vmcnt(0)")
    e("s_barrier")
    for m in range(5):
        if m == 4:
            e("s_cmp_ge_u32 s36, 2"); e("s_cbranch_scc1 %s" % L("Bend"))
        e("ds_read_b64_tr_b16 v[8:9], v6 offset:%d" % (m * 4096))
        e("ds_read_b64_tr_b16 v[10:11], v6 offset:%d" % (m * 4096 + 512))
        e("s_waitcnt lgkmcnt(0)")
        e("buffer_store_dwordx4 v[8:11], v7, s[28:31], s45 offen")
        e("s_add_u32 s45, s45, 4096")
        e("s_nop 0")
        e("s_waitcnt vmcnt(0)")
    A.label(L("Bend"))
    e("s_endpgm")

    A.label(L("C"))
    srd(A, 24, 12, 0, 32 * 648)
    srd(A, 28, 22, WS.PHIF, WS.PHIF_SZ)
    e("s_sub_u32 s37, s2, %d" % bC)
    e("v_mov_b32 v8, 0"); e("v_mov_b32 v9, 0")
    e("v_mul_u32_u24 v2, 24, v0")
    e("ds_write_b64 v2, v[8:9]"); e("ds_write_b64 v2, v[8:9] offset:8"); e("ds_write_b64 v2, v[8:9] offset:16")
    e("s_mul_i32 s38, s37, 648")
    for p in range(2):
        ve = 10 + 8 * p
        e("v_add_u32 v%d, %d, v0" % (ve, 256 * p))
        e("v_mul_u32_u24 v%d, 3641, v%d" % (ve + 1, ve)); e("v_lshrrev_b32 v%d, 16, v%d" % (ve + 1, ve + 1))
        e("v_mul_u32_u24 v%d, 18, v%d" % (ve + 2, ve + 1)); e("v_sub_u32 v%d, v%d, v%d" % (ve + 2, ve, ve + 2))
        e("v_lshlrev_b32 v%d, 1, v%d" % (ve + 6, ve))
        e("v_mov_b32 v30, 0x40000000")
        e("v_cmp_gt_u32 vcc, 324, v%d" % ve)
        e("s_nop 1")
        e("v_cndmask_b32 v%d, v30, v%d, vcc" % (ve + 6, ve + 6))
        e("buffer_load_ushort v%d, v%d, s[24:27], s38 offen" % (ve + 3, ve + 6))
        e("v_lshrrev_b32 v31, 4, v%d" % (ve + 2)); e("v_lshlrev_b32 v31, 5, v31")
        e("v_bfe_u32 v32, v%d, 2, 2" % (ve + 2)); e("v_lshl_add_u32 v31, v32, 3, v31")
        e("v_and_b32 v32, 3, v%d" % (ve + 2)); e("v_add_u32 v31, v31, v32")
        e("v_mul_u32_u24 v31, 96, v31")
        def kpos(vR, vout):
            e("v_and_b32 v%d, 0x33, v%d" % (vout, vR))
            e("v_bfe_u32 v33, v%d, 2, 1" % vR); e("v_lshl_add_u32 v%d, v33, 3, v%d" % (vout, vout))
            e("v_bfe_u32 v33, v%d, 3, 1" % vR); e("v_lshl_add_u32 v%d, v33, 2, v%d" % (vout, vout))
        kpos(ve + 1, 34)
        e("v_lshl_add_u32 v%d, v34, 1, v31" % (ve + 4))
        e("v_add_u32 v35, 18, v%d" % (ve + 1))
        kpos(35, 34)
        e("v_lshl_add_u32 v%d, v34, 1, v31" % (ve + 5))
        e("v_add_u32 v%d, %d, v%d" % (ve + 5, 4 * 96, ve + 5))
    e("s_waitcnt lgkmcnt(0)")
    e("s_barrier")
    e("s_waitcnt vmcnt(0)")
    e("ds_write_b16 v14, v13"); e("ds_write_b16 v15, v13")
    e("v_cmp_gt_u32 vcc, 68, v0")
    e("s_and_saveexec_b64 s[40:41], vcc")
    e("s_cbranch_execz %s" % L("C2"))
    e("ds_write_b16 v22, v21"); e("ds_write_b16 v23, v21")
    A.label(L("C2"))
    e("s_mov_b64 exec, s[40:41]")
    e("s_waitcnt lgkmcnt(0)")
    e("s_barrier")
    e("v_and_b32 v2, 31, v1"); e("v_mul_u32_u24 v2, 96, v2")
    e("v_lshrrev_b32 v3, 5, v1"); e("v_lshl_add_u32 v2, v3, 4, v2")
    e("v_lshlrev_b32 v7, 4, v1")
    for p in range(2):
        if p == 1:
            e("s_cmp_ge_u32 s36, 2"); e("s_cbranch_scc1 %s" % L("Cend"))
        e("s_add_u32 s39, s36, %d" % (4 * p))
        e("s_cmp_ge_u32 s39, 3")
        e("s_cselect_b32 s40, 1, 0")
        e("s_mul_i32 s41, s40, 3"); e("s_sub_u32 s41, s39, s41")
        e("s_mul_i32 s40, s40, %d" % (32 * 96)); e("s_lshl_b32 s41, s41, 5"); e("s_add_u32 s40, s40, s41")
        e("v_add_u32 v4, s40, v2")
        e("ds_read_b128 v[8:11], v4")
        e("s_mul_i32 s42, s37, 6"); e("s_add_u32 s42, s42, s39"); e("s_lshl_b32 s42, s42, 10")
        e("s_waitcnt lgkmcnt(0)")
        e("buffer_store_dwordx4 v[8:11], v7, s[28:31], s42 offen")
        e("s_waitcnt vmcnt(0)")
    A.label(L("Cend"))
    e("s_endpgm")

    A.label(L("G"))
    srd(A, 24, 16, 0, 576 * 9216)
    srd(A, 28, 22, WS.W1F, WS.W1F_SZ)
    srd(A, 32, 18, 0, 4608 * 2)
    e("s_sub_u32 s37, s2, %d" % bG)
    e("v_and_b32 v2, 31, v0")
    e("v_lshrrev_b32 v3, 5, v0")
    e("v_mul_u32_u24 v4, 72, v3")
    e("s_mov_b32 s38, 9216")
    e("v_mul_lo_u32 v4, v4, s38")
    e("v_lshl_add_u32 v4, v2, 2, v4")
    e("s_lshl_b32 s39, s37, 7")
    e("v_mov_b32 v5, 0x00003f80"); e("v_mov_b32 v6, 0x3f800000")
    e("v_mov_b32 v8, 0"); e("v_mov_b32 v9, 0"); e("v_mov_b32 v10, 0"); e("v_mov_b32 v11, 0")
    e("v_and_b32 v12, 15, v1")
    e("s_lshl_b32 s40, s36, 4")
    e("v_add_u32 v12, s40, v12")
    e("v_lshlrev_b32 v13, 1, v12")
    e("buffer_load_ushort v14, v13, s[32:35], s39 offen")
    for half in range(2):
        for i in range(36):
            e("buffer_load_dword v%d, v4, s[24:27], s39 offen" % (16 + i))
            e("s_add_u32 s39, s39, 9216")
        for i in range(36):
            e("s_waitcnt vmcnt(%d)" % (35 - i))
            e("v_dot2_f32_bf16 v%d, v%d, v5, v%d" % (8 + 2 * (i & 1), 16 + i, 8 + 2 * (i & 1)))
            e("v_dot2_f32_bf16 v%d, v%d, v6, v%d" % (9 + 2 * (i & 1), 16 + i, 9 + 2 * (i & 1)))
    e("s_nop 1")
    e("v_add_f32 v8, v8, v10"); e("v_add_f32 v9, v9, v11")
    e("v_lshlrev_b32 v15, 8, v3"); e("v_lshl_add_u32 v15, v2, 3, v15")
    e("ds_write_b64 v15, v[8:9]")
    e("s_waitcnt lgkmcnt(0)")
    e("s_barrier")
    e("v_lshlrev_b32 v15, 2, v12")
    for k in range(8):
        e("ds_read_b32 v%d, v15 offset:%d" % (16 + k, k * 256))
    e("s_waitcnt lgkmcnt(0)")
    for k in range(1, 8):
        e("v_add_f32 v16, v16, v%d" % (16 + k))
    e("v_cvt_pk_bf16_f32 v17, v16, v16")
    e("v_and_b32 v18, 0xffff0000, v17")
    e("v_sub_f32 v18, v16, v18")
    e("v_cvt_pk_bf16_f32 v18, v18, v18")
    e("v_and_b32 v18, 0xffff, v18")
    e("v_lshl_or_b32 v18, v14, 16, v18")
    e("v_mov_b32 v19, v14")
    e("v_mov_b32 v20, 0")
    e("v_cmp_gt_u32 vcc, 16, v1")
    e("s_nop 1")
    e("v_cndmask_b32 v17, 0, v17, vcc"); e("v_cndmask_b32 v18, 0, v18, vcc"); e("v_cndmask_b32 v19, 0, v19, vcc")
    e("v_mov_b32 v8, v17"); e("v_mov_b32 v9, v18"); e("v_mov_b32 v10, v19"); e("v_mov_b32 v11, v20")
    e("s_lshl_b32 s40, s37, 2"); e("s_add_u32 s40, s40, s36"); e("s_mul_i32 s40, s40, 19"); e("s_lshl_b32 s40, s40, 10")
    e("v_lshlrev_b32 v7, 4, v1")
    e("buffer_store_dwordx4 v[8:11], v7, s[28:31], s40 offen")
    e("s_endpgm")

    A.label(L("D"))
    srd(A, 24, 16, 0, 576 * 9216)
    srd(A, 28, 22, WS.W1F, WS.W1F_SZ)
    e("s_sub_u32 s41, s2, %d" % bD)
    e("s_mul_i32 s42, s41, 3641"); e("s_lshr_b32 s42, s42, 16")
    e("s_mul_i32 s43, s42, 18"); e("s_sub_u32 s43, s41, s43")
    e("s_mul_i32 s37, s43, %d" % (32 * 9216)); e("s_mul_i32 s44, s42, 1152"); e("s_add_u32 s37, s37, s44")
    e("s_mov_b32 s38, 9216")
    e("s_mul_i32 s39, s42, %d" % (36 * 19)); e("s_add_u32 s39, s39, s43"); e("s_add_u32 s39, s39, 1")
    e("s_mov_b32 s40, 19")
    e("s_branch %s" % L("T"))
    A.label(L("E"))
    srd(A, 24, 20, 0, 4608 * 1152)
    srd(A, 28, 22, WS.W2F, WS.W2F_SZ)
    e("s_sub_u32 s41, s2, %d" % bE)
    e("s_mul_i32 s42, s41, 3641"); e("s_lshr_b32 s42, s42, 16")
    e("s_mul_i32 s43, s42, 18"); e("s_sub_u32 s43, s41, s43")
    e("s_mul_i32 s37, s41, %d" % (32 * 1152))
    e("s_mov_b32 s38, 1152")
    e("s_mul_i32 s39, s42, %d" % (36 * 18)); e("s_add_u32 s39, s39, s43")
    e("s_mov_b32 s40, 18")
    e("s_branch %s" % L("T"))
    A.label(L("F"))
    srd(A, 24, 14, 0, 576 * 1152)
    srd(A, 28, 22, WS.WOF, WS.WOF_SZ)
    e("s_sub_u32 s39, s2, %d" % bF)
    e("s_mul_i32 s37, s39, %d" % (32 * 1152))
    e("s_mov_b32 s38, 1152")
    e("s_mov_b32 s40, 18")
    A.label(L("T"))
    e("v_lshrrev_b32 v2, 3, v1")
    e("s_lshl_b32 s41, s36, 3")
    e("v_add_u32 v2, s41, v2")
    e("v_mul_lo_u32 v2, v2, s38")
    e("v_and_b32 v3, 7, v1")
    e("v_lshl_add_u32 v2, v3, 4, v2")
    e("s_mul_i32 s42, s36, 9216")
    for cb in range(9):
        e("s_add_u32 m0, s42, %d" % (cb * 1024 - cb * 128))
        e("s_nop 0")
        e("buffer_load_dwordx4 v2, s[24:27], s37 offen offset:%d lds" % (cb * 128))
    e("v_lshrrev_b32 v4, 5, v1"); e("v_mul_u32_u24 v4, 9216, v4")
    e("v_bfe_u32 v5, v1, 4, 1"); e("v_lshl_add_u32 v4, v5, 9, v4")
    e("v_bfe_u32 v5, v1, 2, 2"); e("v_lshl_add_u32 v4, v5, 7, v4")
    e("v_and_b32 v5, 3, v1"); e("v_lshl_add_u32 v4, v5, 3, v4")
    e("s_lshl_b32 s43, s36, 5")
    e("v_add_u32 v4, s43, v4")
    e("s_mul_i32 s43, s36, s40"); e("s_add_u32 s43, s43, s39"); e("s_lshl_b32 s43, s43, 10")
    e("s_lshl_b32 s44, s40, 12")
    e("v_lshlrev_b32 v7, 4, v1")
    e("s_waitcnt vmcnt(0)")
    e("s_barrier")
    for m in range(9):
        e("ds_read_b64_tr_b16 v[%d:%d], v4 offset:%d" % (8 + 4 * m, 9 + 4 * m, m * 1024))
        e("ds_read_b64_tr_b16 v[%d:%d], v4 offset:%d" % (10 + 4 * m, 11 + 4 * m, m * 1024 + 18432))
    for m in range(9):
        e("s_waitcnt lgkmcnt(%d)" % min(15, 16 - 2 * m))
        e("buffer_store_dwordx4 v[%d:%d], v7, s[28:31], s43 offen" % (8 + 4 * m, 11 + 4 * m))
        e("s_add_u32 s43, s43, s44")
    e("s_endpgm")

    A.label(L("H"))
    srd(A, 28, 22, WS.KVP, WS.KVP_SZ)
    e("s_sub_u32 s37, s2, %d" % bH)
    e("s_lshl_b32 s37, s37, 16")
    for k in range(4): e("v_mov_b32 v%d, -1" % (8 + k))
    e("v_lshlrev_b32 v2, 4, v0")
    for i in range(16):
        e("buffer_store_dwordx4 v[8:11], v2, s[28:31], s37 offen")
        e("s_add_u32 s37, s37, 4096")
    A.label(L("done"))
    e("s_endpgm")
    return dict(name=name, grid=K0_GRID, block=256, lds=K0_LDS, nvgpr=144, accum=144, nsgpr=64)
```

```python
class Asm:
    def __init__(self):
        self.lines = []
        self.nlabel = 0
    def e(self, s):
        self.lines.append("    " + s)
    def c(self, s):
        self.lines.append("    ; " + s)
    def label(self, name):
        self.lines.append(name + ":")
    def newlabel(self, base="L"):
        self.nlabel += 1
        return "%s_%d" % (base, self.nlabel)
    def raw(self, s):
        self.lines.append(s)
    def text(self):
        return "\n".join(self.lines) + "\n"

def v(n, cnt=1):
    return "v%d" % n if cnt == 1 else "v[%d:%d]" % (n, n + cnt - 1)
def a(n, cnt=1):
    return "a%d" % n if cnt == 1 else "a[%d:%d]" % (n, n + cnt - 1)
def s(n, cnt=1):
    return "s%d" % n if cnt == 1 else "s[%d:%d]" % (n, n + cnt - 1)
def r(n, cnt=1):
    if n < 256:
        assert n + cnt <= 256, (n, cnt)
        return v(n, cnt)
    return a(n - 256, cnt)

def kernel_header(A, name):
    A.raw(".globl %s" % name)
    A.raw(".p2align 8")
    A.raw(".type %s,@function" % name)
    A.raw("%s:" % name)

def kernel_desc(name, nvgpr, accum_offset, nsgpr=102):
    return """.p2align 6
.amdhsa_kernel %s
  .amdhsa_next_free_vgpr %d
  .amdhsa_next_free_sgpr %d
  .amdhsa_accum_offset %d
  .amdhsa_group_segment_fixed_size 0
  .amdhsa_kernarg_size 96
  .amdhsa_user_sgpr_count 2
  .amdhsa_user_sgpr_kernarg_segment_ptr 1
  .amdhsa_system_sgpr_workgroup_id_x 1
  .amdhsa_float_denorm_mode_32 3
  .amdhsa_float_denorm_mode_16_64 3
.end_amdhsa_kernel
""" % (name, nvgpr, nsgpr, accum_offset)
```

```python
import re
TRANS = ("v_exp_f32", "v_log_f32", "v_rcp_f32", "v_rsq_f32", "v_sqrt_f32", "v_sin_f32", "v_cos_f32")
def regs(tok):
    tok = tok.strip()
    neg = tok.lstrip("-|").rstrip("|")
    m = re.fullmatch(r"([vas])(\d+)", neg)
    if m: return [(m.group(1), int(m.group(2)))]
    m = re.fullmatch(r"([vas])\[(\d+):(\d+)\]", neg)
    if m: return [(m.group(1), i) for i in range(int(m.group(2)), int(m.group(3)) + 1)]
    if neg == "vcc": return [("s", 106), ("s", 107)]
    if neg == "exec": return [("s", 126), ("s", 127)]
    if neg == "m0": return [("s", 124)]
    m = re.fullmatch(r"abs\(([vas]\d+)\)", neg)
    if m: return regs(m.group(1))
    return []
def parse(line):
    line = line.split(";")[0].strip()
    if not line or line.endswith(":") or line.startswith("."): return None
    parts = line.split(None, 1)
    op = parts[0]
    ops = []
    if len(parts) > 1:
        ops = [x.strip() for x in re.split(r",(?![^\[]*\])", parts[1])]
        last = ops[-1].split()
        ops[-1] = last[0] if last else ""
        mods = last[1:]
    else:
        mods = []
    return op, ops, mods
def check(text, verbose=True):
    insts = []
    for ln, line in enumerate(text.split("\n"), 1):
        p = parse(line)
        if p: insts.append((ln, line.strip(), p))
    problems = []
    info = []
    for ln, line, (op, ops, mods) in insts:
        w, rd = [], []
        isv = op.startswith("v_")
        if op.startswith("v_mfma"):
            w = regs(ops[0]); rd = regs(ops[1]) + regs(ops[2]); c = regs(ops[3])
            info.append(dict(ln=ln, line=line, op=op, kind="mfma", w=w, ab=rd, c=c, r=rd + c, passes=8 if "32x32" in op else 4))
            continue
        if op.startswith("v_cmp"):
            w = regs(ops[0]); rd = sum((regs(x) for x in ops[1:]), [])
            if op.startswith("v_cmpx"): w += regs("exec")
        elif op.startswith("v_permlane"):
            w = regs(ops[0]) + regs(ops[1]); rd = w[:]
        elif op in ("v_readfirstlane_b32", "v_readlane_b32"):
            w = regs(ops[0]); rd = regs(ops[1])
        elif op.startswith("v_fmac") or op.startswith("v_dot2c"):
            w = regs(ops[0]); rd = sum((regs(x) for x in ops), [])
        elif op.startswith("v_add_co") or op.startswith("v_addc_co") or op.startswith("v_sub_co"):
            w = regs(ops[0]) + regs(ops[1]); rd = sum((regs(x) for x in ops[2:]), [])
        elif isv:
            w = regs(ops[0]); rd = sum((regs(x) for x in ops[1:]), [])
            if op.startswith("v_cndmask") and len(ops) == 3: rd += regs("vcc")
        elif op.startswith("buffer_load") or op.startswith("global_load"):
            if "lds" in mods:
                rd = sum((regs(x) for x in ops), []) + regs("m0")
            else:
                w = regs(ops[0]); rd = sum((regs(x) for x in ops[1:]), [])
        elif op.startswith("buffer_store") or op.startswith("global_store") or op.startswith("buffer_atomic") or op.startswith("global_atomic"):
            rd = sum((regs(x) for x in ops), [])
        elif op.startswith("ds_read") or op.startswith("ds_bperm") or op.startswith("ds_swizzle"):
            w = regs(ops[0]); rd = sum((regs(x) for x in ops[1:]), [])
        elif op.startswith("ds_write") or op.startswith("ds_add"):
            rd = sum((regs(x) for x in ops), [])
        elif op.startswith("s_"):
            if op in ("s_waitcnt", "s_nop", "s_barrier", "s_endpgm", "s_branch", "s_sleep", "s_setprio") or op.startswith("s_cbranch"):
                pass
            elif op.startswith("s_cmp"):
                rd = sum((regs(x) for x in ops), [])
            elif "saveexec" in op:
                w = regs(ops[0]) + regs("exec"); rd = regs(ops[1])
            else:
                w = regs(ops[0]); rd = sum((regs(x) for x in ops[1:]), [])
        kind = "valu" if isv else ("vmem" if op.startswith(("buffer_", "global_")) else ("ds" if op.startswith("ds_") else "salu"))
        info.append(dict(ln=ln, line=line, op=op, kind=kind, w=w, r=rd, mods=mods, ops=ops))
    def states(i):
        x = info[i]
        if x["op"] == "s_nop": return int(x["ops"][0], 0) + 1
        return 1
    n = len(info)
    for i, x in enumerate(info):
        dist = 0
        j = i - 1
        while j >= 0 and dist < 20:
            p = info[j]
            if p["op"] in ("s_branch", "s_endpgm"): break
            pw = set(p["w"]);
            def need(nreq, why):
                if dist < nreq:
                    problems.append("line %d: %s  <- line %d: %s : need %d wait states (%s), have %d" % (x["ln"], x["line"], p["ln"], p["line"], nreq, why, dist))
            xr = set(x["r"]); xw = set(x["w"])
            vv = lambda S: {q for q in S if q[0] in "va"}
            ss = lambda S: {q for q in S if q[0] == "s"}
            if p["kind"] == "valu":
                if x["kind"] == "mfma" and vv(pw) & xr: need(2, "VALU->MFMA")
                if p["op"].startswith(TRANS) and x["kind"] == "valu" and not x["op"].startswith(TRANS) and vv(pw) & xr: need(1, "trans->VALU")
                if x["op"].startswith("v_permlane") and vv(pw) & xr: need(2, "VALU->permlane")
                if x["kind"] == "valu" and any(m.startswith(("row_", "quad_perm", "wave_")) for m in x.get("mods", [])) and vv(pw) & set(regs(x["ops"][1])): need(2, "VALU->DPP")
                if x["op"] in ("v_readfirstlane_b32", "v_readlane_b32") and vv(pw) & xr: need(1, "VALU->readlane")
                if x["kind"] == "vmem" and ss(pw) & xr: need(5, "VALU sgpr->VMEM")
                if x["kind"] == "valu" and ss(pw) & xr and not x["op"].startswith("v_readlane"): need(2, "VALU sgpr->VALU const")
                if x["kind"] == "mfma" and (("s", 126) in pw): need(4, "VALU exec->MFMA")
            if p["kind"] == "mfma":
                np_ = p["passes"]
                raw = {8: 12, 4: 8}[np_]
                if x["kind"] == "mfma":
                    if pw & set(x["ab"]): need(raw, "MFMA D->MFMA A/B")
                    if pw & set(x["c"]) and set(x["c"]) != pw: need({8: 10, 4: 6}[np_], "MFMA D->partial C")
                elif x["kind"] in ("valu", "vmem", "ds"):
                    if pw & (xr | xw): need(raw, "MFMA D->VALU/mem")
                if x["kind"] == "valu" and set(p["c"]) & xw: need({8: 7, 4: 3}[np_], "MFMA C WAR")
            if p["kind"] == "salu" and ("s", 124) in pw and x["kind"] == "vmem" and "lds" in x.get("mods", []): need(1, "M0->LDS DMA")
            if p["kind"] == "vmem" and p["op"].endswith(("dwordx4", "dwordx3")) and "store" in p["op"] and x["kind"] == "valu":
                if set(regs(p["ops"][0])) & xw or (p["op"].startswith("global_store") and set(regs(p["ops"][1])) & xw): need(2, "store data WAR")
            dist += states(j)
            j -= 1
    if verbose:
        for q in problems: print("HAZARD:", q)
    return problems
if __name__ == "__main__":
    import sys
    check(open(sys.argv[1]).read())
```

```python
import sys, importlib
from common import *
import k0
HEADER = open("sequential_preLN__linear_kernel_hedgehog__dense_activation_gelu__prompt.s.ref").read().split("; Override launch")[0]

def build(kernels, extra_launch=None):
    A = Asm()
    metas = []
    for g in kernels:
        A.raw("")
        metas.append(g(A))
    out = [HEADER.rstrip("\n")]
    order = extra_launch or [m["name"] for m in metas]
    md = {m["name"]: m for m in metas}
    for n in order:
        m = md[n]
        out.append("; @launch kernel=%s grid=(%d,1,1) block=(%d,1,1) lds=%d" % (m["name"], m["grid"], m["block"], m["lds"]))
    out.append('.amdgcn_target "amdgcn-amd-amdhsa--gfx950"')
    out.append(".text")
    out.append(A.text())
    out.append("    s_nop 0\n" * 64)
    out.append('.section .rodata,"a"')
    for m in metas:
        out.append(kernel_desc(m["name"], m["nvgpr"], m["accum"], m["nsgpr"]))
    return "\n".join(out)

if __name__ == "__main__":
    ks = [k0.gen_k0]
    for name in ["k1", "k2", "k3", "k4"]:
        try:
            mod = importlib.import_module(name)
            ks.append(getattr(mod, "gen_" + name))
        except ModuleNotFoundError:
            pass
    txt = build(ks)
    outp = sys.argv[1] if len(sys.argv) > 1 else "out.s"
    open(outp, "w").write(txt)
    import hazard
    p = hazard.check(txt)
    print("hazards:", len(p), "bytes:", len(txt))
```

```python
import sys, importlib, os
from common import *
import k0
HEADER = open("sequential_preLN__linear_kernel_hedgehog__dense_activation_gelu__prompt.s.ref").read().split("; Override launch")[0]

def gen_empty(A, name="empty_kernel"):
    kernel_header(A, name)
    A.e("s_endpgm")
    return dict(name=name, grid=256, block=256, lds=0, nvgpr=8, accum=8, nsgpr=16)

def build(kernels, order=None):
    A = Asm()
    metas = []
    for g in kernels:
        A.raw("")
        metas.append(g(A))
    out = [HEADER.rstrip("\n")]
    order = order or [m["name"] for m in metas]
    md = {m["name"]: m for m in metas}
    for n in order:
        m = md[n]
        out.append("; @launch kernel=%s grid=(%d,1,1) block=(%d,1,1) lds=%d" % (m["name"], m["grid"], m["block"], m["lds"]))
    out.append('.amdgcn_target "amdgcn-amd-amdhsa--gfx950"')
    out.append(".text")
    out.append(A.text())
    out.append("    s_nop 0\n" * 64)
    out.append('.section .rodata,"a"')
    for m in metas:
        out.append(kernel_desc(m["name"], m["nvgpr"], m["accum"], m["nsgpr"]))
    return "\n".join(out)

if __name__ == "__main__":
    ks = [k0.gen_k0]
    for name in ["k1", "k2", "k3", "k4"]:
        mod = importlib.import_module(name)
        ks.append(getattr(mod, "gen_" + name))
    order = None
    nempty = int(os.environ.get("NEMPTY", "0"))
    if nempty:
        ks.append(gen_empty)
        order = ["k0_kernel", "k1_kernel", "k2_kernel", "k3_kernel", "k4_kernel"] + ["empty_kernel"] * nempty
    txt = build(ks, order)
    outp = sys.argv[1] if len(sys.argv) > 1 else "out.s"
    open(outp, "w").write(txt)
    import hazard
    p = hazard.check(txt)
    print("hazards:", len(p), "bytes:", len(txt))
```
